```python
import torch

def _softmax(x, axis=-1):
    return torch.softmax(x, dim=axis)
def _gelu(x):
    return torch.nn.functional.gelu(x, approximate="tanh")
def _silu(x):
    return torch.nn.functional.silu(x)
def _sigmoid(x):
    return torch.sigmoid(x)
def _layernorm(x, axis=-1, eps=1e-5):
    m = x.mean(dim=axis, keepdim=True)
    v = x.var(dim=axis, keepdim=True, unbiased=False)
    return (x - m) / torch.sqrt(v + eps)
def _scatter_add(tgt, idx, src, axis=0):
    return tgt.clone().index_add_(axis, idx, src)
def _segment_sum(src, seg, n):
    out = torch.zeros((n,) + src.shape[1:], dtype=src.dtype)
    return out.index_add_(0, seg, src)
def _pad(x, pw):
    flat = tuple(v for pair in reversed(pw) for v in pair)
    return torch.nn.functional.pad(x, flat)

kernel_name = 'gated_mix__compressed_kv_cla__mixer_token_mlp__decode'

def setup_inputs():

    _w = (lambda a: (lambda t: t.to(torch.bfloat16) if t.is_floating_point() else t)(torch.as_tensor(a)))
    def _A_setup():
        B, H, Sq, Sk, D, M = 4, 32, 1, 4096, 128, 576
        Dc = 4 * D
        return {
            "x": _w((lambda *s: torch.randn(*s, dtype=torch.bfloat16) * 0.05)(B, Sq, M)),
            "c_kv": _w((lambda *s: torch.randn(*s, dtype=torch.bfloat16) * 0.4)(B, Sk, Dc)),
            "w_q": _w((lambda *s: torch.randn(*s, dtype=torch.bfloat16) * 3.2)(M, H, D) * (M ** -0.5)),
            "w_uk": _w((lambda *s: torch.randn(*s, dtype=torch.bfloat16) * 3.2)(Dc, H, D) * (Dc ** -0.5)),
            "w_uv": _w((lambda *s: torch.randn(*s, dtype=torch.bfloat16) * 0.4)(Dc, H, D) * (Dc ** -0.5)),
            "w_o": _w((lambda *s: torch.randn(*s, dtype=torch.bfloat16) * 0.4)(H, D, M) * ((H * D) ** -0.5)),
        }
    _A_in = _A_setup()

    def _B_setup():
        B, S, D, F = 4, 1, 576, 4608
        return {
            "x": _w((lambda *s: torch.randn(*s, dtype=torch.bfloat16) * 0.05)(B, S, D)),
            "w1": _w((lambda *s: torch.randn(*s, dtype=torch.bfloat16) * 0.05)(S, F) * (S ** -0.5)),
            "b1": _w((lambda *s: torch.randn(*s, dtype=torch.bfloat16) * 0.05)(F) * 0.02),
            "w2": _w((lambda *s: torch.randn(*s, dtype=torch.bfloat16) * 0.05)(F, S) * (F ** -0.5)),
            "b2": _w((lambda *s: torch.randn(*s, dtype=torch.bfloat16) * 0.05)(S) * 0.02),
        }
    _B_in = _B_setup()

    return {
        "A_x": _A_in["x"],
        "A_c_kv": _A_in["c_kv"],
        "A_w_q": _A_in["w_q"],
        "A_w_uk": _A_in["w_uk"],
        "A_w_uv": _A_in["w_uv"],
        "A_w_o": _A_in["w_o"],
        "B_x": _B_in["x"],
        "B_w1": _B_in["w1"],
        "B_b1": _B_in["b1"],
        "B_w2": _B_in["w2"],
        "B_b2": _B_in["b2"],
        "gate_w": _w((lambda *s: torch.randn(*s, dtype=torch.bfloat16) * 0.05)(576) * 16.0),
    }

def reference(A_x, A_c_kv, A_w_q, A_w_uk, A_w_uv, A_w_o, B_x, B_w1, B_b1, B_w2, B_b2, gate_w):
    def _A_ref(x, c_kv, w_q, w_uk, w_uv, w_o):
        B, Sq, M = x.shape[0], x.shape[1], x.shape[2]
        Sk = c_kv.shape[1]
        H, D = w_q.shape[1], w_q.shape[2]
        q = torch.einsum("bqm,mhd->bhqd", x, w_q)
        k = torch.einsum("bkc,chd->bhkd", c_kv, w_uk)
        v = torch.einsum("bkc,chd->bhkd", c_kv, w_uv)
        scores = torch.einsum("bhqd,bhkd->bhqk", q, k) * (D ** -0.5)
        off = Sk - Sq
        qi = torch.arange(Sq)[:, None]
        kj = torch.arange(Sk)[None, :]
        cmask = kj <= (qi + off)
        scores = torch.where(cmask[None, None], scores, -1e9)
        p = _softmax(scores, axis=-1)
        ctx = torch.einsum("bhqk,bhkd->bhqd", p, v)
        return torch.einsum("bhqd,hdm->bqm", ctx, w_o)

    def _B_ref(x, w1, b1, w2, b2):
        B, S, D = x.shape
        h = _layernorm(x, axis=-1)
        u = torch.einsum("bsd,sf->bdf", h, w1) + b1
        u = _gelu(u)
        y = torch.einsum("bdf,fs->bds", u, w2) + b2
        return (lambda x, *d: x.permute(*d))(y, 0, 2, 1)

    x = A_x
    g = _sigmoid((x * gate_w).sum(-1, keepdims=True))
    a = _A_ref(x, A_c_kv, A_w_q, A_w_uk, A_w_uv, A_w_o)
    b = _B_ref(x, B_w1, B_b1, B_w2, B_b2)
    return g * a + (1 - g) * b
```

```python
import re

TRANS = ("v_exp_f32", "v_log_f32", "v_rcp_f32", "v_rsq_f32", "v_sqrt_f32", "v_sin_f32", "v_cos_f32")

def regs_of(tok):
    tok = tok.strip()
    neg = tok.lstrip('-')
    if neg.startswith('abs(') : neg = neg[4:-1]
    neg = neg.strip('|')
    m = re.fullmatch(r'([vsa])(\d+)', neg)
    if m: return [(m.group(1), int(m.group(2)))]
    m = re.fullmatch(r'([vsa])\[(\d+):(\d+)\]', neg)
    if m: return [(m.group(1), i) for i in range(int(m.group(2)), int(m.group(3)) + 1)]
    if neg in ('vcc', 'vcc_lo', 'vcc_hi'): return [('x', 'vcc')]
    if neg in ('exec', 'exec_lo', 'exec_hi'): return [('x', 'exec')]
    if neg == 'm0': return [('x', 'm0')]
    return []

class Ins:
    __slots__ = ('text', 'mn', 'ops', 'defs', 'uses', 'kind', 'passes', 'srcc', 'srcab', 'mods')
    def __init__(self, text):
        self.text = text
        t = text.split(';')[0].strip()
        parts = t.split(None, 1)
        self.mn = parts[0]
        rest = parts[1] if len(parts) > 1 else ''
        ops = []; cur = ''; depth = 0
        for ch in rest:
            if ch in '[(': depth += 1
            if ch in '])': depth -= 1
            if ch == ',' and depth == 0: ops.append(cur.strip()); cur = ''
            else: cur += ch
        if cur.strip(): ops.append(cur.strip())
        self.mods = ''
        if ops:
            sp = ops[-1].split(None, 1)
            if len(sp) > 1 and not ops[-1].startswith('hwreg'):
                ops[-1] = sp[0]; self.mods = sp[1]
        self.ops = ops
        mn = self.mn
        self.defs = []; self.uses = []; self.passes = 0; self.srcc = []; self.srcab = []
        R = [regs_of(o) for o in ops]
        flat = lambda L: [x for l in L for x in l]
        if mn.startswith('v_mfma'):
            self.kind = 'mfma'
            self.defs = R[0]; self.srcab = R[1] + R[2]; self.srcc = R[3] if len(R) > 3 else []
            self.uses = self.srcab + self.srcc
            self.passes = 8 if '32x32' in mn else 4
        elif mn.startswith('v_'):
            self.kind = 'valu'
            if mn.startswith('v_cmp'):
                if len(ops) == 3: self.defs = R[0]; self.uses = R[1] + R[2]
                else: self.defs = [('x', 'vcc')]; self.uses = flat(R)
                if mn.startswith('v_cmpx'): self.defs = self.defs + [('x', 'exec')]
            elif mn.startswith('v_permlane') and 'swap' in mn:
                self.defs = R[0] + R[1]; self.uses = R[0] + R[1]
            elif mn.startswith(('v_add_co', 'v_sub_co', 'v_addc_co', 'v_subb_co')):
                self.defs = R[0] + R[1]; self.uses = flat(R[2:])
            else:
                self.defs = R[0]; self.uses = flat(R[1:])
                if mn.startswith(('v_fmac', 'v_dot2c', 'v_pk_fmac', 'v_mac')) or 'dpp' in mn or 'row_' in self.mods or 'quad_perm' in self.mods:
                    self.uses = self.uses + R[0]
                if mn.startswith('v_cndmask') and len(ops) == 3: self.uses = self.uses + [('x', 'vcc')]
                if mn.startswith('v_writelane'): self.uses = self.uses + R[0]
        elif mn.startswith(('buffer_', 'global_', 'flat_')):
            self.kind = 'vmem'
            lds = ('lds' in self.mods.split()) or ('_lds_' in mn)
            if 'load' in mn and not lds:
                self.defs = R[0]; self.uses = flat(R[1:])
                if 'd16' in mn: self.uses = self.uses + R[0]
            elif 'atomic' in mn and ('sc0' in self.mods.split()):
                self.defs = R[0]; self.uses = flat(R[1:]) if mn.startswith('global') else flat(R)
            else:
                self.uses = flat(R)
            if lds: self.uses = self.uses + [('x', 'm0')]
        elif mn.startswith('ds_'):
            self.kind = 'ds'
            if mn.startswith(('ds_read', 'ds_bpermute', 'ds_permute', 'ds_swizzle')):
                self.defs = R[0]; self.uses = flat(R[1:])
            else:
                self.uses = flat(R)
        elif mn.startswith('s_'):
            self.kind = 'salu'
            if mn in ('s_nop', 's_waitcnt', 's_barrier', 's_endpgm', 's_sleep', 's_setprio', 's_branch') or mn.startswith('s_cbranch'):
                pass
            elif mn.startswith('s_cmp') or mn.startswith('s_bitcmp'):
                self.uses = flat(R)
            else:
                self.defs = R[0] if R else []; self.uses = flat(R[1:])
                if 'saveexec' in mn: self.defs = self.defs + [('x', 'exec')]; self.uses = self.uses + [('x', 'exec')]
        else:
            raise ValueError('unknown instr ' + text)
    def is_dpp(self): return self.kind == 'valu' and ('dpp' in self.mn or 'row_' in self.mods or 'quad_perm' in self.mods)
    def is_trans(self): return self.mn.replace('_e32', '').replace('_e64', '') in TRANS
    def states(self):
        if self.mn == 's_nop': return int(self.ops[0], 0) + 1
        return 1

def inter(a, b): return bool(set(a) & set(b))
def isv(r): return r[0] in 'va'
def iss(r): return r[0] == 's' or r == ('x', 'vcc')

def need(p, c):
    n = 0
    pv = [r for r in p.defs if isv(r)]
    ps = [r for r in p.defs if iss(r)]
    if p.kind == 'valu':
        if c.kind == 'mfma' and inter(pv, c.uses): n = max(n, 2)
        if c.kind == 'valu':
            if p.is_trans() and not c.is_trans() and inter(pv, c.uses): n = max(n, 1)
            if c.mn.startswith(('v_readlane', 'v_readfirstlane')) and inter(pv, c.uses): n = max(n, 1)
            if c.is_dpp() and inter(pv, c.uses): n = max(n, 2)
            if c.mn.startswith('v_permlane') and inter(pv, c.uses): n = max(n, 2)
            if inter(ps, c.uses):
                n = max(n, 4 if c.mn.startswith(('v_readlane', 'v_writelane')) else 2)
            if ('x', 'exec') in p.defs:
                if c.is_dpp(): n = max(n, 5)
                if c.mn.startswith(('v_readlane', 'v_readfirstlane', 'v_writelane', 'v_permlane')): n = max(n, 4)
        if c.kind == 'mfma' and ('x', 'exec') in p.defs: n = max(n, 4)
        if c.kind == 'vmem' and inter(ps, c.uses): n = max(n, 5)
    if p.kind == 'mfma':
        big = {4: 8, 8: 12}[p.passes]
        if c.kind == 'mfma':
            if inter(p.defs, c.srcab): n = max(n, big)
            if inter(p.defs, c.srcc):
                same = (list(p.defs) == list(c.srcc)) and p.mn == c.mn
                if not same: n = max(n, {4: 6, 8: 10}[p.passes])
            if inter(p.defs, c.defs) and not (list(p.defs) == list(c.defs) and list(c.srcc) == list(c.defs) and p.mn == c.mn):
                n = max(n, big)
        elif c.kind in ('valu', 'vmem', 'ds'):
            if inter(p.defs, c.uses) or inter(p.defs, c.defs): n = max(n, big)
        if c.kind == 'valu' and inter(p.srcc, c.defs): n = max(n, {4: 3, 8: 7}[p.passes])
    if p.kind == 'salu' and ('x', 'm0') in p.defs and c.kind in ('vmem', 'ds') and ('x', 'm0') in c.uses: n = max(n, 1)
    if p.kind == 'vmem' and 'store' in p.mn and ('x4' in p.mn or 'x3' in p.mn):
        data = [r for r in p.uses if isv(r)]
        if c.kind == 'valu' and inter(data, c.defs): n = max(n, 2)
        if c.kind in ('vmem', 'ds') and inter(data, c.defs): n = max(n, 1)
    if p.kind == 'ds' and p.mn.startswith('ds_write') and ('b128' in p.mn or 'b96' in p.mn):
        data = [r for r in p.uses if isv(r)]
        if c.kind == 'valu' and inter(data, c.defs): n = max(n, 2)
    return n

class Asm:
    def __init__(self):
        self.items = []
    def e(self, text):
        for line in text.split('\n'):
            t = line.split(';')[0].strip()
            if not t:
                if line.strip(): self.items.append(('raw', '  ' + line.strip()))
                continue
            if t.endswith(':'): self.items.append(('label', t)); continue
            if t.startswith('.'): self.items.append(('raw', line)); continue
            self.items.append(('ins', Ins(line.strip())))
    def raw(self, text): self.items.append(('raw', text))
    def render(self, pad=True):
        out = []; hist = []
        npad = 0
        for k, it in self.items:
            if k == 'raw': out.append(it); continue
            if k == 'label': out.append(it); continue
            ins = it
            if pad:
                req = 0; dist = 0
                for p in reversed(hist):
                    if dist >= 20: break
                    r = need(p, ins) - dist
                    if r > req: req = r
                    dist += p.states()
                while req > 0:
                    s = min(req, 16)
                    nop = Ins('s_nop %d' % (s - 1)); hist.append(nop); out.append('  s_nop %d' % (s - 1)); req -= s; npad += 1
            hist.append(ins); out.append('  ' + ins.text)
            if len(hist) > 64: hist = hist[-40:]
        self.npad = npad
        return '\n'.join(out) + '\n'
```

```python
import sys, math
sys.path.insert(0, 'work')
from asmlib import Asm

NAME = "gated_mix__compressed_kv_cla__mixer_token_mlp__decode_kernel"

WS_EPOCH = 0
WS_H1 = 0x1000
WS_H2 = WS_H1 + 128 * 128 * 16
WS_H3 = WS_H2 + 4 * 32 * 128 * 16
WS_H5 = WS_H3 + 128 * 24576
WS_DBG = WS_H5 + 128 * 9216
WS_END = WS_DBG + 256 * 8 * 64

W_WQ, W_WUV, W_TOP = 0, 40960, 147456
W_XI = W_TOP; W_QIMG = W_TOP + 5120; W_COEF = W_QIMG; W_Y = W_COEF + 9216; W_GST = W_Y + 1152
W_OP, W_STAT, W_DUMMY, W_SC, W_OI2, W_CI, W_OUTI = 0, 18432, 18944, 19456, 20480, 21632, 22784
A_QI = 131072; A_QS = 1056; A_PI = A_QI + 16 * A_QS; A_PS = 544; A_ST = A_PI + 16 * A_PS; A_SUM = A_ST + 512
A_RED = 32768

LOG2E = 1.4426950408889634
QSCALE = (128 ** -0.5) * LOG2E
C0 = -2.0 * LOG2E * math.sqrt(2.0 / math.pi)
C1 = C0 * 0.044715
POLL_LIMIT = 200000

import struct
def f2u(x): return struct.unpack('<I', struct.pack('<f', x))[0]
def hx(x): return '0x%08x' % (x & 0xffffffff)
def fl(x): return hx(f2u(x))

S_X, S_CKV, S_WQ, S_WUK, S_WUV, S_WO, S_W1 = 4, 6, 8, 10, 12, 14, 18
S_B1, S_W2, S_B2, S_GATE, S_OUT, S_DBG, S_WS = 20, 22, 24, 26, 28, 30, 32
S_E, S_TAG, S_WAVE, S_XC, S_J = 34, 35, 36, 37, 38
S_H, S_QTR, S_WI = 39, 40, 41
S_SRD = 44
S_T0, S_T1, S_T2, S_T3, S_T4, S_T5 = 48, 49, 50, 51, 52, 53
S_OK = 54
S_CNT = 56
S_MASK = 58
S_STAMP = 64

def vr(a, n=1): return 'v%d' % a if n == 1 else 'v[%d:%d]' % (a, a + n - 1)
def sr(a, n=1): return 's%d' % a if n == 1 else 's[%d:%d]' % (a, a + n - 1)

class G:
    def __init__(self, dev=False, stop=99, opts=None):
        self.a = Asm(); self.dev = dev; self.stop = stop; self.nlab = 0; self.opts = opts or {}
    def e(self, t): self.a.e(t)
    def lab(self, base):
        self.nlab += 1; return 'L_%s_%d' % (base, self.nlab)
    def stamp(self, i):
        if self.dev:
            self.e('s_memrealtime %s\ns_waitcnt lgkmcnt(0)' % sr(S_STAMP + 2 * i, 2))
    def srd(self, sptr, nbytes):
        self.e(f'''s_mov_b32 s{S_SRD}, s{sptr}
s_and_b32 s{S_SRD+1}, s{sptr+1}, 0xffff
s_mov_b32 s{S_SRD+2}, {nbytes}
s_mov_b32 s{S_SRD+3}, 0x00020000''')
    def dma_laneoff(self, dst, rs, t0, t1):
        self.e(f'''v_lshrrev_b32 v{t0}, 3, v1
v_and_b32 v{t1}, 6, v{t0}
v_and_b32 v{dst}, 7, v1
v_xor_b32 v{t1}, v{t1}, v{dst}
v_lshlrev_b32 v{t1}, 4, v{t1}
v_mul_u32_u24 v{t0}, {rs}, v{t0}
v_add_u32 v{dst}, v{t0}, v{t1}''')
    def dma(self, vaddr, soff):
        self.e(f'buffer_load_dwordx4 v{vaddr}, {sr(S_SRD,4)}, s{soff} offen nt lds')
    def tr_base(self, dst, t0, t1, blkstride, pair_expr_s=None, pair_const=None):
        e = self.e
        e(f'''v_and_b32 v{t0}, 1, v3
v_lshlrev_b32 v{t0}, 2, v{t0}
v_lshrrev_b32 v{t1}, 2, v2
v_add_u32 v{t0}, v{t0}, v{t1}
v_bfe_u32 v{t1}, v2, 1, 1''')
        if pair_expr_s is not None:
            e(f'v_lshl_add_u32 v{t1}, s{pair_expr_s}, 1, v{t1}')
        elif pair_const:
            e(f'v_add_u32 v{t1}, {2*pair_const}, v{t1}')
        e(f'''v_and_b32 v{dst}, 6, v{t0}
v_xor_b32 v{t1}, v{t1}, v{dst}
v_lshlrev_b32 v{t1}, 4, v{t1}
v_lshl_add_u32 v{t1}, v{t0}, 7, v{t1}
v_and_b32 v{t0}, 1, v2
v_lshl_add_u32 v{t1}, v{t0}, 3, v{t1}
v_lshrrev_b32 v{t0}, 1, v3
v_mul_u32_u24 v{t0}, {blkstride}, v{t0}
v_add_u32 v{dst}, v{t0}, v{t1}''')
    def poll(self, loads, tagregs, sleep=1):
        L = self.lab('poll'); D = self.lab('pdone')
        e = self.e
        e(f's_mov_b32 s{S_CNT}, 0')
        e(L + ':')
        for l in loads: e(l)
        e('s_waitcnt vmcnt(0)')
        for i, t in enumerate(tagregs):
            if i == 0: e(f'v_cmp_eq_u32 {sr(S_OK,2)}, s{S_TAG}, v{t}')
            else: e(f'v_cmp_eq_u32 vcc, s{S_TAG}, v{t}\ns_and_b64 {sr(S_OK,2)}, {sr(S_OK,2)}, vcc')
        e(f'''s_cmp_eq_u64 {sr(S_OK,2)}, -1
s_cbranch_scc1 {D}
s_add_u32 s{S_CNT}, s{S_CNT}, 1
s_cmp_lt_u32 s{S_CNT}, {POLL_LIMIT}''')
        if sleep: e(f's_sleep {sleep}')
        e(f's_cbranch_scc1 {L}')
        e(D + ':')
    def wave_sum(self, v, t):
        e = self.e
        for r in (8, 4, 2, 1):
            e(f'v_add_f32_dpp v{v}, v{v}, v{v} row_ror:{r} row_mask:0xf bank_mask:0xf')
        self.xquad(v, t, 'v_add_f32')
    def xquad(self, v, t, op):
        e = self.e
        e(f'v_mov_b32 v{t}, v{v}\nv_permlane16_swap_b32 v{v}, v{t}\n{op} v{v}, v{v}, v{t}')
        e(f'v_mov_b32 v{t}, v{v}\nv_permlane32_swap_b32 v{v}, v{t}\n{op} v{v}, v{v}, v{t}')

    def prologue(self):
        e = self.e
        e(f'''s_cmp_ge_u32 s2, 256
s_cbranch_scc1 L_end
s_load_dwordx16 s[4:19], s[0:1], 0
s_load_dwordx8 s[20:27], s[0:1], 64
s_load_dwordx4 s[28:31], s[0:1], 96
s_load_dwordx2 s[32:33], s[0:1], 112''')
        if self.dev: e(f's_memrealtime {sr(S_STAMP,2)}')
        e(f'''v_and_b32 v1, 63, v0
v_lshrrev_b32 v4, 6, v0
v_and_b32 v2, 15, v1
v_readfirstlane_b32 s{S_WAVE}, v4
v_lshrrev_b32 v3, 4, v1
s_and_b32 s{S_XC}, s2, 7
s_lshr_b32 s{S_J}, s2, 3
s_mov_b32 s{S_MASK}, 0x000f000f
s_mov_b32 s{S_MASK+1}, 0x000f000f
s_waitcnt lgkmcnt(0)
s_load_dword s{S_E}, {sr(S_WS,2)}, {WS_EPOCH}
s_cmp_ge_u32 s{S_J}, 16
s_cbranch_scc1 L_A''')

    def make_tag(self):
        self.e(f'''s_waitcnt lgkmcnt(0)
s_mul_i32 s{S_TAG}, s{S_E}, 0x9e3779b1
s_add_u32 s{S_TAG}, s{S_TAG}, 0x7f4a7c15''')

    def finish(self, role):
        e = self.e
        if self.dev:
            e('s_memrealtime %s\ns_waitcnt lgkmcnt(0)' % sr(S_STAMP + 30, 2))
            e(f's_mov_b64 exec, 1')
            e(f's_lshl_b32 s{S_T0}, s2, 3\ns_add_u32 s{S_T0}, s{S_T0}, s{S_WAVE}\ns_lshl_b32 s{S_T0}, s{S_T0}, 6\ns_add_u32 s{S_T0}, s{S_T0}, {WS_DBG}\nv_mov_b32 v4, s{S_T0}')
            for i in range(16):
                e(f'v_mov_b32 v5, s{S_STAMP+2*i}\nglobal_store_dword v4, v5, {sr(S_WS,2)} offset:{4*i}')
            e('s_waitcnt vmcnt(0)')
        e('s_endpgm')

    def role_W(self):
        e = self.e
        V_DMA8 = 4
        V_T = 5
        V_XF = 12
        V_UK = 30
        V_AF = 46
        V_ACC = 64
        V_GR = 68
        V_BF = 72
        e(f'''s_lshr_b32 s{S_T0}, s{S_J}, 2
s_lshl_b32 s{S_H}, s{S_XC}, 2
s_add_u32 s{S_H}, s{S_H}, s{S_T0}
s_and_b32 s{S_QTR}, s{S_J}, 3
s_lshl_b32 s{S_WI}, s{S_H}, 2
s_add_u32 s{S_WI}, s{S_WI}, s{S_QTR}''')
        lx = self.lab('xi')
        self.srd(S_X, 4608)
        e(f'''v_lshlrev_b32 v{V_T}, 4, v1
s_lshl_b32 s{S_T0}, s{S_WAVE}, 10
s_add_u32 s{S_T1}, s{S_T0}, {W_XI}
s_cmp_ge_u32 s{S_WAVE}, 5
s_cbranch_scc1 {lx}
s_mov_b32 m0, s{S_T1}
buffer_load_dwordx4 v{V_T}, {sr(S_SRD,4)}, s{S_T0} offen lds
{lx}:''')
        self.srd(S_WQ, 576 * 8192)
        self.dma_laneoff(V_DMA8, 8192, V_T + 1, V_T + 2)
        e(f'''s_mul_i32 s{S_T0}, s{S_QTR}, {144*8192}
s_lshr_b32 s{S_T1}, s{S_WAVE}, 1
s_lshl_b32 s{S_T1}, s{S_T1}, 16
s_add_u32 s{S_T0}, s{S_T0}, s{S_T1}
s_lshl_b32 s{S_T1}, s{S_H}, 8
s_add_u32 s{S_T0}, s{S_T0}, s{S_T1}
s_and_b32 s{S_T1}, s{S_WAVE}, 1
s_lshl_b32 s{S_T1}, s{S_T1}, 7
s_add_u32 s{S_T0}, s{S_T0}, s{S_T1}
s_lshl_b32 s{S_T1}, s{S_WAVE}, 10''')
        for i in range(4):
            e(f's_mov_b32 m0, s{S_T1}')
            self.dma(V_DMA8, S_T0)
            e(f's_add_u32 s{S_T0}, s{S_T0}, {4*8*8192}\ns_add_u32 s{S_T1}, s{S_T1}, 8192')
        l5 = self.lab('wq5')
        e(f's_cmp_ge_u32 s{S_WAVE}, 4\ns_cbranch_scc1 {l5}\ns_mov_b32 m0, s{S_T1}')
        self.dma(V_DMA8, S_T0)
        e(l5 + ':')
        e(f's_and_b32 s{S_T0}, s{S_WAVE}, 3')
        V_TRQ = V_T + 3
        self.tr_base(V_TRQ, V_T + 1, V_T + 2, 2048, pair_expr_s=S_T0)
        e(f's_lshr_b32 s{S_T0}, s{S_WAVE}, 2\ns_lshl_b32 s{S_T0}, s{S_T0}, 10\nv_add_u32 v{V_TRQ}, s{S_T0}, v{V_TRQ}')
        V_A1 = V_T + 4
        e(f'''s_lshl_b32 s{S_T0}, s{S_WI}, 7
s_lshl_b32 s{S_T1}, s{S_WAVE}, 4
s_add_u32 s{S_T0}, s{S_T0}, s{S_T1}
v_lshl_add_u32 v{V_A1}, v3, 2, v2
v_add_u32 v{V_A1}, s{S_T0}, v{V_A1}
v_lshlrev_b32 v{V_A1}, 4, v{V_A1}
v_add_u32 v{V_A1}, {WS_H1}, v{V_A1}''')
        V_XA = V_T + 5
        e(f'''v_and_b32 v{V_XA}, 3, v2
v_mul_u32_u24 v{V_XA}, 1152, v{V_XA}
v_lshl_add_u32 v{V_XA}, v3, 3, v{V_XA}
s_mul_i32 s{S_T0}, s{S_QTR}, 288
s_add_u32 s{S_T0}, s{S_T0}, {W_XI}
v_add_u32 v{V_XA}, s{S_T0}, v{V_XA}''')
        self.make_tag()
        self.stamp(1)
        if self.dev:
            e('s_waitcnt vmcnt(0)'); self.stamp(7)
        e('s_waitcnt vmcnt(0)\ns_barrier')
        self.stamp(2)
        for s in range(5):
            for u in range(2):
                if s == 4 and u == 1: continue
                e(f'ds_read_b64_tr_b16 {vr(V_AF+4*s+2*u,2)}, v{V_TRQ} offset:{W_WQ + (8*s+4*u)*1024}')
                e(f'ds_read_b64 {vr(V_XF+4*s+2*u,2)}, v{V_XA} offset:{64*s+32*u}')
        e('s_waitcnt lgkmcnt(0)')
        for s in range(4):
            c = '0' if s == 0 else vr(V_ACC, 4)
            e(f'v_mfma_f32_16x16x32_bf16 {vr(V_ACC,4)}, {vr(V_AF+4*s,4)}, {vr(V_XF+4*s,4)}, {c}')
        e(f'v_mfma_f32_16x16x16_bf16 {vr(V_ACC,4)}, {vr(V_AF+16,2)}, {vr(V_XF+16,2)}, {vr(V_ACC,4)}')
        e(f'''v_mov_b32 v{V_GR+2}, 0
v_mov_b32 v{V_GR+3}, s{S_TAG}
v_cvt_pk_bf16_f32 v{V_GR}, v{V_ACC}, v{V_ACC+1}
v_cvt_pk_bf16_f32 v{V_GR+1}, v{V_ACC+2}, v{V_ACC+3}
s_mov_b64 exec, {sr(S_MASK,2)}
global_store_dwordx4 v{V_A1}, {vr(V_GR,4)}, {sr(S_WS,2)} sc1
s_mov_b64 exec, -1''')
        e(f'''s_lshl_b32 s{S_T0}, s{S_QTR}, 7
s_lshl_b32 s{S_T1}, s{S_WAVE}, 4
s_add_u32 s{S_T0}, s{S_T0}, s{S_T1}
v_add_u32 v{V_T}, s{S_T0}, v2
v_lshlrev_b32 v{V_T}, 13, v{V_T}
v_lshl_add_u32 v{V_T}, v3, 4, v{V_T}
s_lshl_b32 s{S_T0}, s{S_H}, 8
v_add_u32 v{V_T}, s{S_T0}, v{V_T}''')
        for s in range(4):
            e(f'global_load_dwordx4 {vr(V_UK+4*s,4)}, v{V_T}, {sr(S_WUK,2)} offset:{64*s} nt')
        self.stamp(3)
        V_P = V_T
        e(f'''s_lshl_b32 s{S_T0}, s{S_H}, 13
s_add_u32 s{S_T0}, s{S_T0}, {WS_H1}
v_lshl_add_u32 v{V_P}, v0, 4, s{S_T0}''')
        e(f'''v_lshrrev_b32 v{V_T+1}, 7, v0
v_and_b32 v{V_T+2}, 3, v0
v_lshl_add_u32 v{V_T+1}, v{V_T+1}, 2, v{V_T+2}
v_mul_u32_u24 v{V_T+1}, 272, v{V_T+1}
v_bfe_u32 v{V_T+2}, v0, 2, 5
v_lshl_add_u32 v{V_T+1}, v{V_T+2}, 3, v{V_T+1}
v_add_u32 v{V_T+1}, {W_QIMG}, v{V_T+1}''')
        e(f'''v_and_b32 v{V_T+2}, 3, v2
v_mul_u32_u24 v{V_T+2}, 272, v{V_T+2}
v_lshl_add_u32 v{V_T+2}, v3, 4, v{V_T+2}
v_add_u32 v{V_T+2}, {W_QIMG}, v{V_T+2}''')
        e(f'''s_lshl_b32 s{S_T0}, s{S_H}, 7
s_lshl_b32 s{S_T1}, s{S_QTR}, 5
s_add_u32 s{S_T0}, s{S_T0}, s{S_T1}
s_lshl_b32 s{S_T1}, s{S_WAVE}, 2
s_add_u32 s{S_T0}, s{S_T0}, s{S_T1}
v_lshl_add_u32 v{V_A1}, v2, 12, v3
v_add_u32 v{V_A1}, s{S_T0}, v{V_A1}
v_lshlrev_b32 v{V_A1}, 4, v{V_A1}
v_add_u32 v{V_A1}, {WS_H2}, v{V_A1}''')
        self.poll([f'global_load_dwordx4 {vr(V_GR,4)}, v{V_P}, {sr(S_WS,2)} sc1'], [V_GR + 3])
        self.stamp(4)
        e(f'ds_write_b64 v{V_T+1}, {vr(V_GR,2)}\ns_waitcnt lgkmcnt(0)\ns_barrier')
        for mq in range(4):
            for s in range(4):
                e(f'ds_read_b128 {vr(V_BF+16*mq+4*s,4)}, v{V_T+2} offset:{mq*1088+64*s}')
        first = True
        for mq in range(4):
            e(f's_waitcnt lgkmcnt({12-4*mq})')
            for s in range(4):
                c = '0' if first else vr(V_ACC, 4); first = False
                e(f'v_mfma_f32_16x16x32_bf16 {vr(V_ACC,4)}, {vr(V_UK+4*s,4)}, {vr(V_BF+16*mq+4*s,4)}, {c}')
        e(f's_mov_b32 s{S_T0}, {fl(QSCALE)}')
        for r in range(4): e(f'v_mul_f32 v{V_ACC+r}, s{S_T0}, v{V_ACC+r}')
        e(f'''v_cvt_pk_bf16_f32 v{V_GR}, v{V_ACC}, v{V_ACC+1}
v_cvt_pk_bf16_f32 v{V_GR+1}, v{V_ACC+2}, v{V_ACC+3}
v_mov_b32 v{V_GR+2}, 0
v_mov_b32 v{V_GR+3}, s{S_TAG}
s_mov_b64 exec, {sr(S_MASK,2)}
global_store_dwordx4 v{V_A1}, {vr(V_GR,4)}, {sr(S_WS,2)} sc1
s_mov_b64 exec, -1''')
        self.stamp(5)
        if self.stop <= 2:
            e('s_waitcnt vmcnt(0)'); self.finish('W'); return
        self.role_W2()

    def role_W2(self):
        e = self.e
        V_DMA8 = 4
        V_T = 5
        V_DMAO = 28
        V_UV = 32
        V_WO = 48
        V_Z = 128
        V_BZ = 192; V_BU = 196; V_AC = 200
        V_ACC = 208
        V_G = 212
        V_GA = 224
        V_L1 = 227
        V_L2 = 230
        V_TRO = 233
        V_X = 234
        S_RB, S_FB, S_BB, S_G = 60, 61, 62, 63
        self.srd(S_WUV, 512 * 8192)
        e(f"""s_lshl_b32 s{S_T0}, s{S_QTR}, 20
s_lshr_b32 s{S_T1}, s{S_WAVE}, 1
s_lshl_b32 s{S_T1}, s{S_T1}, 16
s_add_u32 s{S_T0}, s{S_T0}, s{S_T1}
s_lshl_b32 s{S_T1}, s{S_H}, 8
s_add_u32 s{S_T0}, s{S_T0}, s{S_T1}
s_and_b32 s{S_T1}, s{S_WAVE}, 1
s_lshl_b32 s{S_T1}, s{S_T1}, 7
s_add_u32 s{S_T0}, s{S_T0}, s{S_T1}
s_lshl_b32 s{S_T1}, s{S_WAVE}, 10
s_add_u32 s{S_T1}, s{S_T1}, {W_WUV}
s_barrier""")
        for i2 in range(4):
            e(f's_mov_b32 m0, s{S_T1}')
            self.dma(V_DMA8, S_T0)
            e(f's_add_u32 s{S_T0}, s{S_T0}, {4*8*8192}\ns_add_u32 s{S_T1}, s{S_T1}, 8192')
        e(f"""s_lshr_b32 s{S_RB}, s{S_WI}, 4
s_and_b32 s{S_FB}, s{S_WI}, 15
s_lshr_b32 s{S_BB}, s{S_RB}, 1""")
        e(f"""s_mul_i32 s{S_T0}, s{S_FB}, 576
v_min_u32 v{V_T}, 287, v0
v_lshl_add_u32 v{V_T}, v{V_T}, 1, s{S_T0}
global_load_ushort v{V_T+1}, v{V_T}, {sr(S_W1,2)}
global_load_ushort v{V_T+2}, v{V_T}, {sr(S_B1,2)}
global_load_ushort v{V_T+3}, v{V_T}, {sr(S_W2,2)}
s_load_dword s{S_T5}, {sr(S_B2,2)}, 0""")
        e(f"""v_lshlrev_b32 v{V_T+4}, 2, v1
v_min_u32 v{V_T+5}, 1148, v{V_T+4}""")
        for k in range(5):
            if k < 4: e(f'global_load_dword v{V_X+k}, v{V_T+4}, {sr(S_GATE,2)} offset:{256*k}')
            else: e(f'v_add_u32 v{V_T+5}, 1024, v{V_T+4}\nv_min_u32 v{V_T+5}, 1148, v{V_T+5}\nglobal_load_dword v{V_X+k}, v{V_T+5}, {sr(S_GATE,2)}')
        e(f"""s_and_b32 s{S_T0}, s{S_WAVE}, 3
s_mul_i32 s{S_T0}, s{S_T0}, 1152
s_add_u32 s{S_T0}, s{S_T0}, {W_XI}
v_add_u32 v{V_T+6}, s{S_T0}, v{V_T+4}""")
        for k in range(5): e(f'ds_read_b32 v{V_X+5+k}, v{V_T+6} offset:{256*k}')
        e(f"""v_mov_b32 v{V_T+7}, 0
v_lshlrev_b32 v{V_T+8}, 2, v0
v_add_u32 v{V_T+8}, {W_Y}, v{V_T+8}
v_cmp_gt_u32 vcc, 288, v0
s_and_saveexec_b64 {sr(S_OK,2)}, vcc
ds_write_b32 v{V_T+8}, v{V_T+7}
s_mov_b64 exec, -1
s_waitcnt vmcnt(0) lgkmcnt(0)""")
        XV = V_Z
        for k in range(5):
            e(f'v_lshlrev_b32 v{XV+2*k}, 16, v{V_X+5+k}\nv_and_b32 v{XV+2*k+1}, 0xffff0000, v{V_X+5+k}')
            e(f'v_lshlrev_b32 v{XV+10+2*k}, 16, v{V_X+k}\nv_and_b32 v{XV+10+2*k+1}, 0xffff0000, v{V_X+k}')
        e(f'v_cmp_gt_u32 vcc, 32, v1')
        for r in (8, 9, 18, 19): e(f'v_cndmask_b32 v{XV+r}, 0, v{XV+r}, vcc')
        SUMX, DOT, TT = V_T + 7, V_T + 9, V_T + 10
        e(f'v_add_f32 v{SUMX}, v{XV}, v{XV+1}\nv_mul_f32 v{DOT}, v{XV}, v{XV+10}')
        for r in range(2, 10): e(f'v_add_f32 v{SUMX}, v{SUMX}, v{XV+r}')
        for r in range(1, 10): e(f'v_fmac_f32 v{DOT}, v{XV+r}, v{XV+10+r}')
        self.wave_sum(SUMX, TT); self.wave_sum(DOT, TT)
        e(f's_mov_b32 s{S_T0}, {fl(1.0/576)}\nv_mul_f32 v{SUMX}, s{S_T0}, v{SUMX}')
        VAR = V_T + 11
        for r in range(10): e(f'v_sub_f32 v{XV+r}, v{XV+r}, v{SUMX}')
        for r in (8, 9): e(f'v_cndmask_b32 v{XV+r}, 0, v{XV+r}, vcc')
        e(f'v_mul_f32 v{VAR}, v{XV}, v{XV}')
        for r in range(1, 10): e(f'v_fmac_f32 v{VAR}, v{XV+r}, v{XV+r}')
        self.wave_sum(VAR, TT)
        e(f"""v_mov_b32 v{TT}, {fl(1e-5)}
v_fmac_f32 v{TT}, s{S_T0}, v{VAR}
v_rsq_f32 v{VAR}, v{TT}
s_mov_b32 s{S_T1}, {fl(-LOG2E)}
v_mul_f32 v{DOT}, s{S_T1}, v{DOT}
v_exp_f32 v{DOT}, v{DOT}
v_add_f32 v{DOT}, 1.0, v{DOT}
v_rcp_f32 v{DOT}, v{DOT}""")
        lg = self.lab('gst')
        e(f"""s_cmp_ge_u32 s{S_WAVE}, 4
s_cbranch_scc1 {lg}
s_lshl_b32 s{S_T0}, s{S_WAVE}, 4
s_add_u32 s{S_T0}, s{S_T0}, {W_GST}
v_mov_b32 v{TT}, s{S_T0}
v_mov_b32 v{V_T+13}, v{DOT}
v_mov_b32 v{V_T+14}, v{SUMX}
v_mov_b32 v{V_T+15}, v{VAR}
v_mov_b32 v{V_T+16}, 0
s_mov_b64 exec, 1
ds_write_b128 v{TT}, {vr(V_T+13,4)}
s_mov_b64 exec, -1
{lg}:""")
        Wc, Bc, Vc = V_T + 1, V_T + 2, V_T + 3
        CF = V_Z + 32
        A3, A2, A1, A0, W1, B1, BB, HI = CF, CF + 1, CF + 2, CF + 3, CF + 4, CF + 5, CF + 6, CF + 7
        D = CF + 16
        e(f"""v_lshlrev_b32 v{Wc}, 16, v{Wc}
v_lshlrev_b32 v{Bc}, 16, v{Bc}
v_lshlrev_b32 v{Vc}, 16, v{Vc}
s_mov_b32 s{S_T0}, {fl(C0)}
s_mov_b32 s{S_T1}, {fl(C1)}
s_mov_b32 s{S_T2}, {fl(3*C1)}
v_mul_f32 v{BB}, v{Bc}, v{Bc}
v_mul_f32 v{A2}, v{Wc}, v{Wc}
v_mul_f32 v{A3}, v{A2}, v{Wc}
v_mul_f32 v{A3}, s{S_T1}, v{A3}
v_mul_f32 v{A2}, v{A2}, v{Bc}
v_mul_f32 v{A2}, s{S_T2}, v{A2}
v_mov_b32 v{A1}, s{S_T0}
v_mov_b32 v{A0}, s{S_T0}
v_fmac_f32 v{A1}, s{S_T2}, v{BB}
v_fmac_f32 v{A0}, s{S_T1}, v{BB}
v_mul_f32 v{A1}, v{A1}, v{Wc}
v_mul_f32 v{A0}, v{A0}, v{Bc}
v_mul_f32 v{W1}, v{Wc}, v{Vc}
v_mul_f32 v{B1}, v{Bc}, v{Vc}""")
        def split(x, hi, lo):
            e(f'v_cvt_pk_bf16_f32 v{hi}, v{x}, v{x}\nv_and_b32 v{hi}, 0xffff0000, v{hi}\nv_sub_f32 v{lo}, v{x}, v{hi}')
        H = [CF + 8, CF + 9]
        split(A3, CF + 8, CF + 9); split(A2, CF + 10, CF + 11)
        e(f"""v_cvt_pk_bf16_f32 v{D}, v{CF+8}, v{CF+9}
v_cvt_pk_bf16_f32 v{D+1}, v{CF+8}, v{CF+10}
v_cvt_pk_bf16_f32 v{D+2}, v{CF+11}, v{CF+10}""")
        for k, x in enumerate((A1, A0, W1, B1)):
            split(x, CF + 8, CF + 9)
            e(f'v_cvt_pk_bf16_f32 v{D+3+k}, v{CF+8}, v{CF+9}')
        e(f"""v_mov_b32 v{D+7}, 0
v_lshlrev_b32 v{CF+8}, 5, v0
v_add_u32 v{CF+8}, {W_COEF}, v{CF+8}
v_cmp_gt_u32 vcc, 288, v0
s_and_saveexec_b64 {sr(S_OK,2)}, vcc
ds_write_b128 v{CF+8}, {vr(D,4)}
ds_write_b128 v{CF+8}, {vr(D+4,4)} offset:16
s_mov_b64 exec, -1
s_waitcnt lgkmcnt(0)
s_barrier""")
        V_TRU = V_T + 4
        e(f's_and_b32 s{S_T0}, s{S_WAVE}, 3')
        self.tr_base(V_TRU, V_T + 5, V_T + 6, 2048, pair_expr_s=S_T0)
        e(f's_lshr_b32 s{S_T0}, s{S_WAVE}, 2\ns_lshl_b32 s{S_T0}, s{S_T0}, 10\ns_add_u32 s{S_T0}, s{S_T0}, {W_WUV}\nv_add_u32 v{V_TRU}, s{S_T0}, v{V_TRU}')
        for s in range(4):
            for u in range(2):
                e(f'ds_read_b64_tr_b16 {vr(V_UV+4*s+2*u,2)}, v{V_TRU} offset:{(8*s+4*u)*1024}')
        e(f"""s_lshl_b32 s{S_T0}, s{S_BB}, 4
s_add_u32 s{S_T0}, s{S_T0}, {W_GST}
v_mov_b32 v{V_T+7}, s{S_T0}
ds_read_b128 {vr(V_X,4)}, v{V_T+7}
s_waitcnt lgkmcnt(0)
s_barrier""")
        self.srd(S_WO, 32 * 128 * 1152)
        self.dma_laneoff(V_DMAO, 1152, V_T + 5, V_T + 6)
        e(f"""s_mul_i32 s{S_T0}, s{S_H}, {128*1152}
s_mul_i32 s{S_T1}, s{S_WAVE}, {16*1152}
s_add_u32 s{S_T0}, s{S_T0}, s{S_T1}
s_mul_i32 s{S_T1}, s{S_WAVE}, {18*1024}""")
        for rr in range(2):
            for g in range(9):
                e(f's_add_u32 s{S_T2}, s{S_T0}, {rr*8*1152 + g*128}\ns_add_u32 m0, s{S_T1}, {(rr*9+g)*1024}')
                self.dma(V_DMAO, S_T2)
        self.stamp(6)
        MEAN, RSTD = V_X + 1, V_X + 2
        def bfrags(col_s=None, col_c=None):
            t = V_T + 8
            e(f"""s_and_b32 s{S_T0}, s{S_RB}, 1
s_mul_i32 s{S_T0}, s{S_T0}, 576
s_mul_i32 s{S_T1}, s{S_BB}, 1152
s_add_u32 s{S_T0}, s{S_T0}, s{S_T1}
s_add_u32 s{S_T0}, s{S_T0}, {W_XI}""")
            if col_s is not None: e(f's_lshl_b32 s{S_T1}, s{col_s}, 6\ns_add_u32 s{S_T0}, s{S_T0}, s{S_T1}')
            else: e(f's_add_u32 s{S_T0}, s{S_T0}, {col_c*64}')
            e(f"""v_and_b32 v{t}, 31, v1
v_lshl_add_u32 v{t}, v{t}, 1, s{S_T0}
ds_read_u16 v{t+1}, v{t}
s_waitcnt lgkmcnt(0)
v_lshlrev_b32 v{t+1}, 16, v{t+1}
v_sub_f32 v{t+1}, v{t+1}, v{MEAN}
v_mul_f32 v{t+1}, v{t+1}, v{RSTD}
v_cvt_pk_bf16_f32 v{t+1}, v{t+1}, v{t+1}
v_and_b32 v{t+2}, 0xffff0000, v{t+1}
v_mul_f32 v{t+3}, v{t+2}, v{t+2}
v_mul_f32 v{t+4}, v{t+3}, v{t+2}""")
            split(t + 3, t + 5, t + 6); split(t + 4, t + 7, t + 8)
            e(f"""v_cvt_pk_bf16_f32 v{V_BZ}, v{t+7}, v{t+7}
v_cvt_pk_bf16_f32 v{V_BZ+1}, v{t+8}, v{t+5}
v_cvt_pk_bf16_f32 v{V_BZ+2}, v{t+5}, v{t+6}
v_mov_b32 v{V_BZ+3}, v{t+1}
v_cmp_gt_u32 vcc, 32, v1
v_mov_b32 v{t+9}, 0x3f803f80
v_cndmask_b32 v{V_BZ}, v{t+9}, v{V_BZ}, vcc
v_cndmask_b32 v{V_BZ+1}, 0, v{V_BZ+1}, vcc
v_cndmask_b32 v{V_BZ+2}, 0, v{V_BZ+2}, vcc
v_cndmask_b32 v{V_BZ+3}, 0, v{V_BZ+3}, vcc
v_mov_b32 v{V_BU}, 0
v_cndmask_b32 v{V_BU+1}, v{t+1}, 0, vcc
v_cndmask_b32 v{V_BU+2}, v{t+9}, 0, vcc
v_mov_b32 v{V_BU+3}, 0""")
        V_CA = V_T + 7
        e(f"""v_and_b32 v{V_CA}, 31, v1
v_lshlrev_b32 v{V_CA}, 5, v{V_CA}
v_lshrrev_b32 v{V_T+8}, 5, v1
v_lshl_add_u32 v{V_CA}, v{V_T+8}, 4, v{V_CA}
v_add_u32 v{V_CA}, {W_COEF}, v{V_CA}""")
        def tile_issue(buf, addr_reg, off):
            e(f'ds_read_b128 {vr(V_AC+4*buf,4)}, v{addr_reg} offset:{off}\ns_waitcnt lgkmcnt(0)')
            z = V_Z + 32 * buf
            e(f'v_mfma_f32_32x32x16_bf16 {vr(z,16)}, {vr(V_AC+4*buf,4)}, {vr(V_BZ,4)}, 0')
            e(f'v_mfma_f32_32x32x16_bf16 {vr(z+16,16)}, {vr(V_AC+4*buf,4)}, {vr(V_BU,4)}, 0')
        def tile_valu(buf):
            z = V_Z + 32 * buf
            for r in range(16): e(f'v_exp_f32 v{z+r}, v{z+r}')
            for r in range(0, 16, 2): e(f'v_pk_add_f32 {vr(z+r,2)}, {vr(z+r,2)}, 1.0 op_sel_hi:[1,0]')
            for r in range(16): e(f'v_rcp_f32 v{z+r}, v{z+r}')
            for r in range(0, 16, 2):
                a = V_ACC + 2 * ((r >> 1) & 1)
                e(f'v_pk_fma_f32 {vr(a,2)}, {vr(z+16+r,2)}, {vr(z+r,2)}, {vr(a,2)}')
        def acc_zero():
            for r in range(4): e(f'v_mov_b32 v{V_ACC+r}, 0')
        def acc_reduce():
            e(f"""v_add_f32 v{V_ACC}, v{V_ACC}, v{V_ACC+1}
v_add_f32 v{V_ACC+2}, v{V_ACC+2}, v{V_ACC+3}
v_add_f32 v{V_ACC}, v{V_ACC}, v{V_ACC+2}
v_mov_b32 v{V_ACC+1}, v{V_ACC}
v_permlane32_swap_b32 v{V_ACC}, v{V_ACC+1}
v_add_f32 v{V_ACC}, v{V_ACC}, v{V_ACC+1}""")
        bfrags(col_s=S_WAVE)
        acc_zero()
        tile_issue(0, V_CA, 0)
        for ft in range(9):
            if ft + 1 < 9: tile_issue((ft + 1) & 1, V_CA, (ft + 1) * 1024)
            tile_valu(ft & 1)
        acc_reduce()
        e(f"""v_and_b32 v{V_T+8}, 31, v1
v_lshlrev_b32 v{V_T+8}, 2, v{V_T+8}
s_lshl_b32 s{S_T0}, s{S_WAVE}, 7
s_add_u32 s{S_T0}, s{S_T0}, {W_Y}
v_add_u32 v{V_T+8}, s{S_T0}, v{V_T+8}
s_mov_b32 exec_hi, 0
ds_write_b32 v{V_T+8}, v{V_ACC}
s_mov_b64 exec, -1""")
        bfrags(col_c=8)
        acc_zero()
        e(f's_lshl_b32 s{S_T0}, s{S_WAVE}, 10\nv_add_u32 v{V_T+9}, s{S_T0}, v{V_CA}')
        tile_issue(0, V_T + 9, 0)
        tile_valu(0)
        l8 = self.lab('t8')
        e(f's_cmp_lg_u32 s{S_WAVE}, 7\ns_cbranch_scc1 {l8}')
        tile_issue(1, V_CA, 8 * 1024)
        e('s_nop 15')
        tile_valu(1)
        e(l8 + ':')
        acc_reduce()
        e(f"""v_and_b32 v{V_T+8}, 31, v1
v_lshlrev_b32 v{V_T+8}, 2, v{V_T+8}
v_add_u32 v{V_T+8}, {W_Y + 256*4}, v{V_T+8}
s_mov_b32 exec_hi, 0
ds_add_f32 v{V_T+8}, v{V_ACC}
s_mov_b64 exec, -1""")
        self.stamp(7)
        S_TB = S_T4
        e(f"""s_mul_i32 s{S_TB}, s{S_WAVE}, 5
s_sub_u32 s{S_T0}, s{S_WAVE}, 4
s_lshl_b32 s{S_T0}, s{S_T0}, 2
s_add_u32 s{S_T0}, s{S_T0}, 20
s_cmp_ge_u32 s{S_WAVE}, 4
s_cselect_b32 s{S_TB}, s{S_T0}, s{S_TB}""")
        self.tr_base(V_TRO, V_T + 8, V_T + 9, 9 * 1024)
        e('s_waitcnt vmcnt(0) lgkmcnt(0)\ns_barrier')
        self.stamp(8)
        for i2 in range(5):
            lt = self.lab('wo')
            if i2 == 4: e(f's_cmp_ge_u32 s{S_WAVE}, 4\ns_cbranch_scc1 {lt}')
            e(f"""s_add_u32 s{S_T0}, s{S_TB}, {i2}
s_and_b32 s{S_T1}, s{S_T0}, 3
s_lshl_b32 s{S_T1}, s{S_T1}, 5
s_lshr_b32 s{S_T0}, s{S_T0}, 2
s_lshl_b32 s{S_T0}, s{S_T0}, 10
v_xor_b32 v{V_T+8}, s{S_T1}, v{V_TRO}
v_add_u32 v{V_T+8}, s{S_T0}, v{V_T+8}
v_add_u32 v{V_T+9}, {8*9*1024}, v{V_T+8}""")
            for s in range(4):
                for u in range(2):
                    R = 4 * s + 2 * u
                    base = V_T + 8 if R < 8 else V_T + 9
                    e(f'ds_read_b64_tr_b16 {vr(V_WO+(i2*4+s)*4+2*u,2)}, v{base} offset:{(R%8)*9*1024}')
            if i2 == 4: e(lt + ':')
        hh_head = S_T3
        e(f"""s_lshr_b32 s{S_T2}, s{S_H}, 4
s_and_b32 s{hh_head}, s{S_H}, 15
s_mul_i32 s{S_T0}, s{S_T2}, 24576
s_mul_i32 s{S_T1}, s{hh_head}, 1536
s_add_u32 s{S_T0}, s{S_T0}, s{S_T1}
s_mul_i32 s{S_T1}, s{S_QTR}, 384
s_add_u32 s{S_T0}, s{S_T0}, s{S_T1}
s_add_u32 s{S_T0}, s{S_T0}, {WS_H3}
s_mov_b32 s{S_T1}, {(2**32 + 23)//24}
s_mov_b32 s{S_T2}, {(2**32 + 11)//12}
s_mov_b32 s{S_T3}, {(2**32 + 2)//3}""")
        t = V_T + 8
        for jx in range(3):
            e(f"""v_add_u32 v{t}, {512*jx}, v0
v_mul_hi_u32 v{t+1}, v{t}, s{S_T1}
v_mul_u32_u24 v{t+2}, 24, v{t+1}
v_sub_u32 v{t+2}, v{t}, v{t+2}
v_mul_u32_u24 v{t+3}, 49152, v{t+1}
v_lshl_add_u32 v{t+3}, v{t+2}, 4, v{t+3}
v_add_u32 v{V_GA+jx}, s{S_T0}, v{t+3}
v_mul_hi_u32 v{t+4}, v{t+2}, s{S_T2}
v_mul_u32_u24 v{t+5}, 12, v{t+4}
v_sub_u32 v{t+5}, v{t+2}, v{t+5}
v_mul_hi_u32 v{t+6}, v{t+5}, s{S_T3}
v_mul_u32_u24 v{t+7}, 3, v{t+6}
v_sub_u32 v{t+7}, v{t+5}, v{t+7}
v_mul_u32_u24 v{t+8}, 288, v{t+1}
v_lshl_add_u32 v{t+8}, v{t+4}, 7, v{t+8}
v_lshl_add_u32 v{t+8}, v{t+6}, 3, v{t+8}
v_lshl_add_u32 v{V_L1+jx}, v{t+7}, 5, v{t+8}
v_add_u32 v{V_L1+jx}, {W_OP}, v{V_L1+jx}
v_lshl_add_u32 v{t+9}, v{t+7}, 2, v{t+8}
v_add_u32 v{t+9}, {W_OP + 96}, v{t+9}
v_lshlrev_b32 v{t+10}, 8, v{t+6}
v_lshl_add_u32 v{t+10}, v{t+1}, 2, v{t+10}
v_add_u32 v{t+10}, {W_STAT}, v{t+10}
v_lshlrev_b32 v{t+11}, 2, v1
v_add_u32 v{t+11}, {W_DUMMY}, v{t+11}
v_lshl_add_u32 v{t+12}, v{t+4}, 2, v{t+6}
v_cmp_gt_u32 vcc, 2, v{t+12}
v_cndmask_b32 v{t+10}, v{t+11}, v{t+10}, vcc
v_cmp_gt_u32 vcc, 2, v{t+7}
v_cndmask_b32 v{V_L2+jx}, v{t+10}, v{t+9}, vcc""")
        e('s_waitcnt lgkmcnt(0)\ns_barrier')
        self.stamp(9)
        self.poll([f'global_load_dwordx4 {vr(V_G+4*jx,4)}, v{V_GA+jx}, {sr(S_WS,2)} sc1' for jx in range(3)],
                  [V_G + 4 * jx + 3 for jx in range(3)])
        self.stamp(10)
        for jx in range(3):
            e(f'ds_write_b64 v{V_L1+jx}, {vr(V_G+4*jx,2)}\nds_write_b32 v{V_L2+jx}, v{V_G+4*jx+2}')
        V_TRP = V_T + 8
        e(f"""v_lshrrev_b32 v{V_T+9}, 2, v2
v_lshl_add_u32 v{V_T+9}, v3, 2, v{V_T+9}
v_mul_u32_u24 v{V_TRP}, 288, v{V_T+9}
v_and_b32 v{V_T+9}, 3, v2
v_lshl_add_u32 v{V_TRP}, v{V_T+9}, 3, v{V_TRP}
s_lshl_b32 s{S_T0}, s{S_WAVE}, 5
s_add_u32 s{S_T0}, s{S_T0}, {W_OP}
v_add_u32 v{V_TRP}, s{S_T0}, v{V_TRP}
v_lshlrev_b32 v{V_T+10}, 2, v1
v_add_u32 v{V_T+10}, {W_STAT}, v{V_T+10}
s_waitcnt lgkmcnt(0)
s_barrier""")
        AF = V_Z
        e(f'ds_read_b32 v{V_T+11}, v{V_T+10}\nds_read_b32 v{V_T+12}, v{V_T+10} offset:256')
        for s in range(2):
            for u in range(2):
                e(f'ds_read_b64_tr_b16 {vr(AF+4*s+2*u,2)}, v{V_TRP} offset:{(32*s+16*u)*288}')
        Mp, Lp, Mx, Wp = V_T + 11, V_T + 12, V_T + 13, V_T + 14
        e(f's_waitcnt lgkmcnt(4)\nv_mov_b32 v{Mx}, v{Mp}')
        for r in (8, 4, 2, 1): e(f'v_max_f32_dpp v{Mx}, v{Mx}, v{Mx} row_ror:{r} row_mask:0xf bank_mask:0xf')
        e(f'v_sub_f32 v{Wp}, v{Mp}, v{Mx}\nv_exp_f32 v{Wp}, v{Wp}\nv_mul_f32 v{Lp}, v{Wp}, v{Lp}')
        for r in (8, 4, 2, 1): e(f'v_add_f32_dpp v{Lp}, v{Lp}, v{Lp} row_ror:{r} row_mask:0xf bank_mask:0xf')
        e(f"""v_rcp_f32 v{Lp}, v{Lp}
v_mul_f32 v{Wp}, v{Wp}, v{Lp}
v_cvt_pk_bf16_f32 v{Wp}, v{Wp}, v{Wp}
s_lshl_b32 s{S_T0}, s{S_WAVE}, 7
s_add_u32 s{S_T0}, s{S_T0}, {W_SC}
v_lshl_add_u32 v{V_T+15}, v1, 1, s{S_T0}
ds_write_b16 v{V_T+15}, v{Wp}
v_and_b32 v{V_T+16}, 3, v2
v_lshlrev_b32 v{V_T+16}, 5, v{V_T+16}
v_lshl_add_u32 v{V_T+16}, v3, 3, v{V_T+16}
v_add_u32 v{V_T+16}, s{S_T0}, v{V_T+16}
s_waitcnt lgkmcnt(0)
ds_read_b64 {vr(V_X+4,2)}, v{V_T+16}
s_waitcnt lgkmcnt(0)""")
        BF = V_Z + 8
        for s in range(2):
            for u in range(2):
                e(f'v_cmp_eq_u32 vcc, {2*s+u}, v2')
                e(f'v_cndmask_b32 v{BF+4*s+2*u}, 0, v{V_X+4}, vcc\nv_cndmask_b32 v{BF+4*s+2*u+1}, 0, v{V_X+5}, vcc')
        ACC = V_Z + 16
        e(f'v_mfma_f32_16x16x32_bf16 {vr(ACC,4)}, {vr(AF,4)}, {vr(BF,4)}, 0')
        e(f'v_mfma_f32_16x16x32_bf16 {vr(ACC,4)}, {vr(AF+4,4)}, {vr(BF+4,4)}, {vr(ACC,4)}')
        V_IW = V_T + 9; V_IR = V_T + 10
        e(f"""s_lshr_b32 s{S_T0}, s{S_WAVE}, 1
s_lshl_b32 s{S_T0}, s{S_T0}, 6
s_and_b32 s{S_T1}, s{S_WAVE}, 1
s_lshl_b32 s{S_T1}, s{S_T1}, 3
s_add_u32 s{S_T0}, s{S_T0}, s{S_T1}
v_and_b32 v{V_IR}, 3, v2
v_mul_u32_u24 v{V_IR}, 272, v{V_IR}
v_lshl_add_u32 v{V_IR}, v3, 4, v{V_IR}
v_add_u32 v{V_IW}, s{S_T0}, v{V_IR}
v_cvt_pk_bf16_f32 v{ACC+4}, v{ACC}, v{ACC+1}
v_cvt_pk_bf16_f32 v{ACC+5}, v{ACC+2}, v{ACC+3}
s_mov_b64 exec, {sr(S_MASK,2)}
ds_write_b64 v{V_IW}, {vr(ACC+4,2)} offset:{W_OI2}
s_mov_b64 exec, -1
s_waitcnt lgkmcnt(0)
s_barrier""")
        BF2 = V_Z + 32
        for s in range(4): e(f'ds_read_b128 {vr(BF2+4*s,4)}, v{V_IR} offset:{W_OI2+64*s}')
        for s in range(4):
            c = '0' if s == 0 else vr(ACC, 4)
            e(f's_waitcnt lgkmcnt({3-s})\nv_mfma_f32_16x16x32_bf16 {vr(ACC,4)}, {vr(V_UV+4*s,4)}, {vr(BF2+4*s,4)}, {c}')
        e(f"""v_cvt_pk_bf16_f32 v{ACC+4}, v{ACC}, v{ACC+1}
v_cvt_pk_bf16_f32 v{ACC+5}, v{ACC+2}, v{ACC+3}
s_mov_b64 exec, {sr(S_MASK,2)}
ds_write_b64 v{V_IW}, {vr(ACC+4,2)} offset:{W_CI}
s_mov_b64 exec, -1
s_waitcnt lgkmcnt(0)
s_barrier""")
        for s in range(4): e(f'ds_read_b128 {vr(BF2+4*s,4)}, v{V_IR} offset:{W_CI+64*s}')
        OA = V_Z + 48
        e('s_waitcnt lgkmcnt(0)')
        l5 = self.lab('m5')
        for s in range(4):
            for i2 in range(4):
                c = '0' if s == 0 else vr(OA + 4 * i2, 4)
                e(f'v_mfma_f32_16x16x32_bf16 {vr(OA+4*i2,4)}, {vr(V_WO+(i2*4+s)*4,4)}, {vr(BF2+4*s,4)}, {c}')
        e(f's_cmp_ge_u32 s{S_WAVE}, 4\ns_cbranch_scc1 {l5}')
        for s in range(4):
            c = '0' if s == 0 else vr(OA + 16, 4)
            e(f'v_mfma_f32_16x16x32_bf16 {vr(OA+16,4)}, {vr(V_WO+(16+s)*4,4)}, {vr(BF2+4*s,4)}, {c}')
        e(l5 + ':')
        e(f"""v_and_b32 v{V_T+11}, 3, v2
v_mul_u32_u24 v{V_T+11}, 2304, v{V_T+11}
v_lshl_add_u32 v{V_T+11}, v3, 4, v{V_T+11}
s_lshl_b32 s{S_T0}, s{S_TB}, 6
s_add_u32 s{S_T0}, s{S_T0}, {W_OUTI}
v_add_u32 v{V_T+11}, s{S_T0}, v{V_T+11}
s_nop 7
s_mov_b64 exec, {sr(S_MASK,2)}""")
        for i2 in range(4): e(f'ds_write_b128 v{V_T+11}, {vr(OA+4*i2,4)} offset:{64*i2}')
        l6 = self.lab('m5')
        e(f's_cmp_ge_u32 s{S_WAVE}, 4\ns_cbranch_scc1 {l6}\nds_write_b128 v{V_T+11}, {vr(OA+16,4)} offset:256\n{l6}:')
        e('s_mov_b64 exec, -1\ns_waitcnt lgkmcnt(0)\ns_barrier')
        self.stamp(11)
        def granule(base_idx, act):
            t = V_T + 8
            e(f"""v_add_u32 v{t}, {base_idx}, v0
s_mov_b32 s{S_T0}, {(2**32 + 143)//144}
v_mul_hi_u32 v{t+1}, v{t}, s{S_T0}
v_mul_u32_u24 v{t+2}, 144, v{t+1}
v_sub_u32 v{t+2}, v{t}, v{t+2}
v_lshlrev_b32 v{t+3}, 4, v{t}
v_add_u32 v{t+4}, {W_OUTI}, v{t+3}
ds_read_b128 {vr(V_G,4)}, v{t+4}
v_lshlrev_b32 v{t+5}, 4, v{t+1}
v_add_u32 v{t+5}, {W_GST}, v{t+5}
ds_read_b32 v{t+6}, v{t+5}
s_and_b32 s{S_T0}, s{S_RB}, 1
s_mul_i32 s{S_T0}, s{S_T0}, 72
v_subrev_u32 v{t+7}, s{S_T0}, v{t+2}
v_cmp_gt_u32 vcc, 72, v{t+7}
v_cmp_eq_u32 {sr(S_OK,2)}, s{S_BB}, v{t+1}
s_and_b64 vcc, vcc, {sr(S_OK,2)}
v_cndmask_b32 v{t+7}, 0, v{t+7}, vcc
v_lshlrev_b32 v{t+7}, 4, v{t+7}
v_add_u32 v{t+7}, {W_Y}, v{t+7}
ds_read_b128 {vr(V_G+4,4)}, v{t+7}
s_cmp_eq_u32 s{S_FB}, 0
s_cselect_b32 s{S_T1}, s{S_T5}, 0
s_lshl_b32 s{S_T1}, s{S_T1}, 16
s_waitcnt lgkmcnt(0)
v_sub_f32 v{t+8}, 1.0, v{t+6}
v_cndmask_b32 v{t+8}, 0, v{t+8}, vcc""")
            for r in range(4):
                e(f'v_add_f32 v{V_G+4+r}, s{S_T1}, v{V_G+4+r}\nv_mul_f32 v{V_G+r}, v{V_G+r}, v{t+6}\nv_fmac_f32 v{V_G+r}, v{V_G+4+r}, v{t+8}')
            e(f"""s_mov_b32 s{S_T2}, 0x07060503
s_mov_b32 s{S_T3}, 0x07060502
s_mov_b32 s{S_T4}, 0x07060501""")
            for r in range(4): e(f'v_add_u32 v{V_G+r}, 0x80, v{V_G+r}')
            e(f"""v_perm_b32 v{V_G+8}, v{V_G}, v{V_G+3}, s{S_T2}
v_perm_b32 v{V_G+9}, v{V_G+1}, v{V_G+3}, s{S_T3}
v_perm_b32 v{V_G+10}, v{V_G+2}, v{V_G+3}, s{S_T4}
v_mov_b32 v{V_G+11}, s{S_TAG}
s_mul_i32 s{S_T0}, s{S_WI}, 9216
s_add_u32 s{S_T0}, s{S_T0}, {WS_H5}
v_add_u32 v{t+3}, s{S_T0}, v{t+3}
global_store_dwordx4 v{t+3}, {vr(V_G+8,4)}, {sr(S_WS,2)} sc1""")
        granule(0, None)
        lw = self.lab('g2')
        e(f's_cmp_lg_u32 s{S_WAVE}, 0\ns_cbranch_scc1 {lw}')
        granule(512, None)
        e(lw + ':')
        self.stamp(12)
        self.finish('W')

    def role_A(self):
        e = self.e
        e('L_A:')
        if self.stop <= 1:
            self.finish('A'); return
        S_B, S_HH, S_A, S_JJ = 39, 40, 41, 42
        V_DMA = 4
        V_TRB = 8
        V_QKE, V_QKO = 16, 17
        V_QB = 18
        V_PB = 19
        V_PW = 20
        V_STW = 21
        V_STR = 22
        V_T = 24
        V_QA = 48
        V_QW = 56
        V_QK = 64; V_PV = 128; V_X = 192; V_S = 204; V_O = 212; V_PF = 228
        QREG = [V_X + 4 * i for i in range(3)] + [V_QK + 4 * i for i in range(13)]
        e(f"""s_sub_u32 s{S_JJ}, s{S_J}, 16
s_lshl_b32 s{S_A}, s{S_XC}, 4
s_add_u32 s{S_A}, s{S_A}, s{S_JJ}
s_and_b32 s{S_HH}, s{S_A}, 1
s_lshr_b32 s{S_B}, s{S_A}, 5""")
        self.srd(S_CKV, 4 * 4096 * 1024)
        self.dma_laneoff(V_DMA, 1024, V_T, V_T + 1)
        S_GO, S_LO = S_T2, S_T3
        e(f"""s_lshr_b32 s{S_T0}, s{S_A}, 1
s_lshl_b32 s{S_T0}, s{S_T0}, 18
s_lshl_b32 s{S_LO}, s{S_WAVE}, 13
s_add_u32 s{S_GO}, s{S_T0}, s{S_LO}""")
        def issue_sub(k, half):
            for g in range(8):
                e(f's_add_u32 s{S_T0}, s{S_GO}, {half*131072 + k*32768 + g*128}')
                e(f's_add_u32 m0, s{S_LO}, {k*32768 + g*1024}')
                self.dma(V_DMA, S_T0)
        lskip = self.lab('nodma')
        e(f's_cmp_ge_u32 s{S_WAVE}, 4\ns_cbranch_scc1 {lskip}')
        for k in range(4): issue_sub(k, 0)
        e(lskip + ':')
        self.tr_base(V_TRB, V_T, V_T + 1, 8192)
        e(f's_lshl_b32 s{S_T0}, s{S_WAVE}, 10\nv_add_u32 v{V_TRB}, s{S_T0}, v{V_TRB}')
        for ct in range(1, 4): e(f'v_xor_b32 v{V_TRB+ct}, {ct<<5}, v{V_TRB}')
        for ct in range(4): e(f'v_add_u32 v{V_TRB+4+ct}, 0x10000, v{V_TRB+ct}')
        e(f"""v_and_b32 v{V_T}, 7, v2
v_and_b32 v{V_T+1}, 6, v{V_T}
v_xor_b32 v{V_T+1}, v{V_T+1}, v3
v_lshlrev_b32 v{V_T+1}, 4, v{V_T+1}
v_lshl_add_u32 v{V_T+1}, v{V_T}, 7, v{V_T+1}
v_lshrrev_b32 v{V_T}, 3, v2
s_lshl_b32 s{S_T0}, s{S_WAVE}, 1
v_add_u32 v{V_T}, s{S_T0}, v{V_T}
v_lshl_add_u32 v{V_QKE}, v{V_T}, 13, v{V_T+1}
v_xor_b32 v{V_QKO}, 64, v{V_QKE}""")
        e(f"""v_mul_u32_u24 v{V_QB}, {A_QS}, v2
v_lshl_add_u32 v{V_QB}, v3, 4, v{V_QB}
v_add_u32 v{V_QB}, {A_QI}, v{V_QB}
v_mul_u32_u24 v{V_PB}, {A_PS}, v2
v_lshl_add_u32 v{V_PB}, v3, 4, v{V_PB}
v_add_u32 v{V_PB}, {A_PI}, v{V_PB}""")
        e(f"""s_lshr_b32 s{S_T0}, s{S_WAVE}, 1
s_lshl_b32 s{S_T0}, s{S_T0}, 6
s_and_b32 s{S_T1}, s{S_WAVE}, 1
s_lshl_b32 s{S_T1}, s{S_T1}, 3
s_add_u32 s{S_T0}, s{S_T0}, s{S_T1}
v_add_u32 v{V_PW}, s{S_T0}, v{V_PB}""")
        e(f"""v_lshlrev_b32 v{V_STR}, 5, v2
v_add_u32 v{V_STR}, {A_ST}, v{V_STR}
s_lshl_b32 s{S_T0}, s{S_WAVE}, 2
v_add_u32 v{V_STW}, s{S_T0}, v{V_STR}""")
        e(f"""s_lshl_b32 s{S_T0}, s{S_B}, 5
s_lshl_b32 s{S_T1}, s{S_HH}, 4
s_add_u32 s{S_T0}, s{S_T0}, s{S_T1}
s_lshl_b32 s{S_T0}, s{S_T0}, 11
s_add_u32 s{S_T0}, s{S_T0}, {WS_H2}
v_and_b32 v{V_T}, 255, v0
v_lshl_add_u32 v{V_QA}, v{V_T}, 4, s{S_T0}""")
        for jx in range(1, 8): e(f'v_add_u32 v{V_QA+jx}, {4096*jx}, v{V_QA}')
        e(f"""v_lshrrev_b32 v{V_T+1}, 7, v{V_T}
v_mul_u32_u24 v{V_T+1}, {A_QS}, v{V_T+1}
v_and_b32 v{V_T}, 127, v{V_T}
v_lshl_add_u32 v{V_QW}, v{V_T}, 3, v{V_T+1}
v_add_u32 v{V_QW}, {A_QI}, v{V_QW}""")
        self.make_tag()
        self.stamp(1)
        for k in range(4):
            l1 = self.lab('cp'); l2 = self.lab('cp')
            e(f's_cmp_ge_u32 s{S_WAVE}, 4\ns_cbranch_scc1 {l1}\ns_waitcnt vmcnt(24)\n{l1}:\ns_barrier')
            if k == 0: self.stamp(2)
            for ct in range(4):
                for u in range(2):
                    off = (4 * k + 2 * u) * 8192
                    base = V_TRB + ct + (4 if off >= 65536 else 0)
                    e(f'ds_read_b64_tr_b16 {vr(V_PV+(ct*4+k)*4+2*u,2)}, v{base} offset:{off & 0xffff}')
            e(f's_lshr_b32 s{S_T0}, s{S_WAVE}, 1\ns_cmp_lg_u32 s{S_T0}, {k}\ns_cbranch_scc1 {l2}')
            for s in range(16):
                e(f'ds_read_b128 {vr(V_QK+4*s,4)}, v{V_QKO if s&1 else V_QKE} offset:{(s>>1)*1024}')
            e(f'{l2}:\ns_waitcnt lgkmcnt(0)\ns_barrier')
            l3 = self.lab('cp')
            e(f's_cmp_ge_u32 s{S_WAVE}, 4\ns_cbranch_scc1 {l3}')
            issue_sub(k, 1)
            e(l3 + ':')
        self.stamp(3)
        lq = self.lab('q')
        e(f's_cmp_lt_u32 s{S_WAVE}, 4\ns_cbranch_scc1 {lq}')
        V_G = V_X
        self.poll([f'global_load_dwordx4 {vr(V_G+4*jx,4)}, v{V_QA+jx}, {sr(S_WS,2)} sc1' for jx in range(8)],
                  [V_G + 4 * jx + 3 for jx in range(8)])
        for jx in range(8):
            e(f'ds_write_b64 v{V_QW}, {vr(V_G+4*jx,2)} offset:{jx*2*A_QS}')
        e('s_waitcnt lgkmcnt(0)')
        e(lq + ':\ns_barrier')
        self.stamp(4)
        def qread(s): e(f'ds_read_b128 {vr(QREG[s],4)}, v{V_QB} offset:{64*s}')
        for s in range(3): qread(s)
        for s in range(16):
            outstanding = min(3, 16 - s)
            e(f's_waitcnt lgkmcnt({outstanding-1})')
            c = '0' if s == 0 else vr(V_S, 4)
            e(f'v_mfma_f32_16x16x32_bf16 {vr(V_S,4)}, {vr(V_QK+4*s,4)}, {vr(QREG[s],4)}, {c}')
            if s + 3 < 16: qread(s + 3)
        self.stamp(5)
        l4 = self.lab('h2')
        e(f's_cmp_ge_u32 s{S_WAVE}, 4\ns_cbranch_scc1 {l4}\ns_waitcnt vmcnt(0)\n{l4}:\ns_barrier')
        self.stamp(6)
        FR = [V_QK + 52, V_QK + 56, V_QK + 60, V_O, V_O + 4, V_O + 8, V_O + 12, V_PF, V_PF + 4, V_PF + 8, V_PF + 12]
        NF = len(FR)
        def cread(s): e(f'ds_read_b128 {vr(FR[s % NF],4)}, v{V_QKO if s&1 else V_QKE} offset:{(s>>1)*1024}')
        for s in range(NF): cread(s)
        issued = NF
        for s in range(16):
            e(f's_waitcnt lgkmcnt({issued - s - 1})')
            c = '0' if s == 0 else vr(V_S + 4, 4)
            e(f'v_mfma_f32_16x16x32_bf16 {vr(V_S+4,4)}, {vr(FR[s % NF],4)}, {vr(QREG[s],4)}, {c}')
            if issued < 16:
                cread(issued); issued += 1
        for ct in range(4):
            for s in range(4):
                for u in range(2):
                    off = (4 * s + 2 * u) * 8192
                    base = V_TRB + ct + (4 if off >= 65536 else 0)
                    e(f'ds_read_b64_tr_b16 {vr(QREG[ct*4+s]+2*u,2)}, v{base} offset:{off & 0xffff}')
        V_M = V_T; V_T1 = V_T + 1; V_L = V_T + 2; V_ST = V_T + 4
        e(f"""v_max_f32 v{V_M}, v{V_S}, v{V_S+1}
v_max3_f32 v{V_M}, v{V_M}, v{V_S+2}, v{V_S+3}
v_max3_f32 v{V_M}, v{V_M}, v{V_S+4}, v{V_S+5}
v_max3_f32 v{V_M}, v{V_M}, v{V_S+6}, v{V_S+7}""")
        self.xquad(V_M, V_T1, 'v_max_f32')
        e(f"""ds_write_b32 v{V_STW}, v{V_M}
s_waitcnt lgkmcnt(0)
s_barrier
ds_read_b128 {vr(V_ST,4)}, v{V_STR}
ds_read_b128 {vr(V_ST+4,4)}, v{V_STR} offset:16
s_waitcnt lgkmcnt(0)
v_max3_f32 v{V_M}, v{V_ST}, v{V_ST+1}, v{V_ST+2}
v_max3_f32 v{V_M}, v{V_M}, v{V_ST+3}, v{V_ST+4}
v_max3_f32 v{V_M}, v{V_M}, v{V_ST+5}, v{V_ST+6}
v_max_f32 v{V_M}, v{V_M}, v{V_ST+7}""")
        for r in range(8): e(f'v_sub_f32 v{V_S+r}, v{V_S+r}, v{V_M}')
        for r in range(8): e(f'v_exp_f32 v{V_S+r}, v{V_S+r}')
        e(f"""v_add_f32 v{V_L}, v{V_S}, v{V_S+1}
v_add_f32 v{V_T1}, v{V_S+2}, v{V_S+3}
v_cvt_pk_bf16_f32 v{V_ST}, v{V_S}, v{V_S+1}
v_cvt_pk_bf16_f32 v{V_ST+1}, v{V_S+2}, v{V_S+3}
v_add_f32 v{V_L}, v{V_L}, v{V_S+4}
v_add_f32 v{V_T1}, v{V_T1}, v{V_S+5}
v_cvt_pk_bf16_f32 v{V_ST+2}, v{V_S+4}, v{V_S+5}
v_cvt_pk_bf16_f32 v{V_ST+3}, v{V_S+6}, v{V_S+7}
v_add_f32 v{V_L}, v{V_L}, v{V_S+6}
v_add_f32 v{V_T1}, v{V_T1}, v{V_S+7}
ds_write_b64 v{V_PW}, {vr(V_ST,2)}
ds_write_b64 v{V_PW}, {vr(V_ST+2,2)} offset:256
v_add_f32 v{V_L}, v{V_L}, v{V_T1}""")
        self.xquad(V_L, V_T1, 'v_add_f32')
        e(f"""ds_write_b32 v{V_STW}, v{V_L} offset:512
s_waitcnt lgkmcnt(0)
s_barrier""")
        self.stamp(7)
        PF = [V_PF, V_PF + 4, V_PF + 8, V_PF + 12]
        def pread(s): e(f'ds_read_b128 {vr(PF[s % 4],4)}, v{V_PB} offset:{64*s}')
        for s in range(4): pread(s)
        e(f'ds_read_b128 {vr(V_ST,4)}, v{V_STR} offset:512\nds_read_b128 {vr(V_ST+4,4)}, v{V_STR} offset:528')
        issued = 4
        order = ['P0', 'P1', 'P2', 'P3', 'S0', 'S1']
        for s in range(8):
            idx = order.index('P%d' % s)
            e(f's_waitcnt lgkmcnt({len(order) - idx - 1})')
            for ct in range(4):
                a = V_PV + (ct * 4 + s) * 4 if s < 4 else QREG[ct * 4 + (s - 4)]
                c = '0' if s == 0 else vr(V_O + 4 * ct, 4)
                e(f'v_mfma_f32_16x16x32_bf16 {vr(V_O+4*ct,4)}, {vr(a,4)}, {vr(PF[s%4],4)}, {c}')
            if issued < 8:
                pread(issued); order.append('P%d' % issued); issued += 1
        e(f"""v_add_f32 v{V_ST}, v{V_ST}, v{V_ST+1}
v_add_f32 v{V_ST+2}, v{V_ST+2}, v{V_ST+3}
v_add_f32 v{V_ST+4}, v{V_ST+4}, v{V_ST+5}
v_add_f32 v{V_ST+6}, v{V_ST+6}, v{V_ST+7}
v_add_f32 v{V_ST}, v{V_ST}, v{V_ST+2}
v_add_f32 v{V_ST+4}, v{V_ST+4}, v{V_ST+6}
v_add_f32 v{V_L}, v{V_ST}, v{V_ST+4}
v_and_b32 v{V_T1}, 1, v3
v_cmp_eq_u32 vcc, 1, v{V_T1}
v_cndmask_b32 v{V_L}, v{V_M}, v{V_L}, vcc""")
        V_GR = V_PF
        e(f"""v_mul_u32_u24 v{V_T+3}, 1536, v2
v_mul_u32_u24 v{V_T1}, 48, v3
v_add_u32 v{V_T+3}, v{V_T+3}, v{V_T1}
s_mul_i32 s{S_T0}, s{S_WAVE}, 192
v_add_u32 v{V_T+3}, s{S_T0}, v{V_T+3}""")
        for g in range(3):
            e(f'v_cvt_pk_bf16_f32 v{V_GR+4*g}, v{V_O+4*g}, v{V_O+4*g+1}')
            e(f'v_cvt_pk_bf16_f32 v{V_GR+4*g+1}, v{V_O+4*g+2}, v{V_O+4*g+3}')
            e(f'v_mov_b32 v{V_GR+4*g+3}, s{S_TAG}')
        e(f"""v_cvt_pk_bf16_f32 v{V_GR+2}, v{V_O+12}, v{V_O+13}
v_cvt_pk_bf16_f32 v{V_GR+6}, v{V_O+14}, v{V_O+15}
v_mov_b32 v{V_GR+10}, v{V_L}""")
        for g in range(3): e(f'ds_write_b128 v{V_T+3}, {vr(V_GR+4*g,4)} offset:{16*g}')
        e(f"""v_lshlrev_b32 v{V_T+4}, 4, v0
s_mul_i32 s{S_T0}, s{S_A}, 24576
s_add_u32 s{S_T0}, s{S_T0}, {WS_H3}
v_add_u32 v{V_T+5}, s{S_T0}, v{V_T+4}
v_add_u32 v{V_T+6}, 8192, v{V_T+5}
v_add_u32 v{V_T+7}, 16384, v{V_T+5}
s_waitcnt lgkmcnt(0)
s_barrier""")
        for g in range(3): e(f'ds_read_b128 {vr(V_GR+4*g,4)}, v{V_T+4} offset:{8192*g}')
        for g in range(3):
            e(f's_waitcnt lgkmcnt({2-g})')
            e(f'global_store_dwordx4 v{V_T+5+g}, {vr(V_GR+4*g,4)}, {sr(S_WS,2)} sc1')
        self.stamp(8)
        if self.stop <= 2:
            e('s_waitcnt vmcnt(0)'); self.finish('A'); return
        self.role_A2()

    def role_A2(self):
        e = self.e
        S_JJ = 42
        lend = self.lab('fin')
        e(f's_cmp_ge_u32 s{S_JJ}, 9\ns_cbranch_scc1 {lend}')
        V_T = 24; V_G = 64
        e(f"""s_mul_i32 s{S_T0}, s{S_XC}, 9
s_add_u32 s{S_T0}, s{S_T0}, s{S_JJ}
s_lshl_b32 s{S_T1}, s{S_T0}, 7
s_add_u32 s{S_T1}, s{S_T1}, {WS_H5}
v_lshrrev_b32 v{V_T}, 3, v0
v_mul_u32_u24 v{V_T}, 9216, v{V_T}
v_and_b32 v{V_T+1}, 7, v0
v_lshl_add_u32 v{V_T}, v{V_T+1}, 4, v{V_T}
v_add_u32 v{V_T}, s{S_T1}, v{V_T}
v_add_u32 v{V_T+2}, {64*9216}, v{V_T}""")
        self.poll([f'global_load_dwordx4 {vr(V_G,4)}, v{V_T}, {sr(S_WS,2)} sc1', f'global_load_dwordx4 {vr(V_G+4,4)}, v{V_T+2}, {sr(S_WS,2)} sc1'],
                  [V_G + 3, V_G + 7])
        self.stamp(9)
        e(f's_mov_b32 s{S_T2}, 0xffffff00\ns_mov_b32 s{S_T3}, 0x00040c0c\ns_mov_b32 s{S_T4}, 0x0706000c')
        R = V_G + 8
        for h in range(2):
            g = V_G + 4 * h; o = R + 4 * h
            e(f"""v_and_b32 v{o}, s{S_T2}, v{g}
v_and_b32 v{o+1}, s{S_T2}, v{g+1}
v_and_b32 v{o+2}, s{S_T2}, v{g+2}
v_perm_b32 v{o+3}, v{g+1}, v{g}, s{S_T3}
v_perm_b32 v{V_T+3}, v{o+3}, v{g+2}, s{S_T4}
v_mov_b32 v{o+3}, v{V_T+3}""")
        for r in range(4): e(f'v_add_f32 v{R+r}, v{R+r}, v{R+4+r}')
        for r in range(4):
            e(f'v_add_f32_dpp v{R+r}, v{R+r}, v{R+r} row_ror:8 row_mask:0xf bank_mask:0xf')
        for r in range(4): self.xquad(R + r, V_T + 4, 'v_add_f32')
        e(f"""v_and_b32 v{V_T+5}, 7, v1
v_lshlrev_b32 v{V_T+5}, 4, v{V_T+5}
s_lshl_b32 s{S_T1}, s{S_WAVE}, 7
s_add_u32 s{S_T1}, s{S_T1}, {A_RED}
v_add_u32 v{V_T+5}, s{S_T1}, v{V_T+5}
s_mov_b64 exec, 0xff
ds_write_b128 v{V_T+5}, {vr(R,4)}
s_mov_b64 exec, -1
s_waitcnt lgkmcnt(0)
s_barrier""")
        lw = self.lab('fw')
        e(f"""s_cmp_lg_u32 s{S_WAVE}, 0
s_cbranch_scc1 {lw}
v_lshlrev_b32 v{V_T+5}, 2, v1
v_add_u32 v{V_T+5}, {A_RED}, v{V_T+5}""")
        for w in range(8): e(f'ds_read_b32 v{R+w}, v{V_T+5} offset:{128*w}')
        e(f"""s_waitcnt lgkmcnt(0)
v_add_f32 v{R}, v{R}, v{R+1}
v_add_f32 v{R+2}, v{R+2}, v{R+3}
v_add_f32 v{R+4}, v{R+4}, v{R+5}
v_add_f32 v{R+6}, v{R+6}, v{R+7}
v_add_f32 v{R}, v{R}, v{R+2}
v_add_f32 v{R+4}, v{R+4}, v{R+6}
v_add_f32 v{R}, v{R}, v{R+4}
v_cvt_pk_bf16_f32 v{R}, v{R}, v{R}
s_lshl_b32 s{S_T0}, s{S_T0}, 6
v_lshl_add_u32 v{V_T+5}, v1, 1, s{S_T0}
s_mov_b32 exec_hi, 0
global_store_short v{V_T+5}, v{R}, {sr(S_OUT,2)}
s_mov_b64 exec, -1""")
        e(f"""s_cmp_lg_u32 s{S_T0}, 0
s_cbranch_scc1 {lw}
s_add_u32 s{S_T1}, s{S_E}, 1
v_mov_b32 v{V_T+6}, s{S_T1}
v_mov_b32 v{V_T+7}, {WS_EPOCH}
s_mov_b64 exec, 1
global_store_dword v{V_T+7}, v{V_T+6}, {sr(S_WS,2)} sc1
s_mov_b64 exec, -1""")
        e(lw + ':')
        e(lend + ':')
        self.stamp(10)
        self.finish('A')

    def build(self):
        self.prologue()
        self.role_W()
        self.role_A()
        self.e('L_end:\ns_endpgm')
        body = self.a.render()
        hdr = open('cdna_kernels/' + NAME[:-7] + '.s.ref').read().split('; Override')[0]
        out = hdr
        out += '; @launch grid=(256,1,1) block=(512,1,1) lds=163840\n'
        out += '.amdgcn_target "amdgcn-amd-amdhsa--gfx950"\n.text\n.globl %s\n.p2align 8\n.type %s,@function\n%s:\n' % (NAME, NAME, NAME)
        out += body
        out += '''.section .rodata,"a"
.p2align 6
.amdhsa_kernel %s
  .amdhsa_next_free_vgpr 256
  .amdhsa_next_free_sgpr 102
  .amdhsa_accum_offset 256
  .amdhsa_group_segment_fixed_size 0
  .amdhsa_kernarg_size 120
  .amdhsa_user_sgpr_count 2
  .amdhsa_user_sgpr_kernarg_segment_ptr 1
  .amdhsa_system_sgpr_workgroup_id_x 1
.end_amdhsa_kernel
''' % NAME
        return out

if __name__ == '__main__':
    import argparse
    ap = argparse.ArgumentParser()
    ap.add_argument('--dev', action='store_true'); ap.add_argument('--stop', type=int, default=99)
    ap.add_argument('-o', default='k.s')
    a = ap.parse_args()
    g = G(dev=a.dev, stop=a.stop)
    open(a.o, 'w').write(g.build())
    print('wrote', a.o, 'nops inserted:', g.a.npad)
```
